```python
import torch

def _softmax(x, axis=-1):
    return torch.softmax(x, dim=axis)
def _gelu(x):
    return torch.nn.functional.gelu(x, approximate="tanh")
def _silu(x):
    return torch.nn.functional.silu(x)
def _sigmoid(x):
    return torch.sigmoid(x)
def _layernorm(x, axis=-1, eps=1e-5):
    m = x.mean(dim=axis, keepdim=True)
    v = x.var(dim=axis, keepdim=True, unbiased=False)
    return (x - m) / torch.sqrt(v + eps)
def _scatter_add(tgt, idx, src, axis=0):
    return tgt.clone().index_add_(axis, idx, src)
def _segment_sum(src, seg, n):
    out = torch.zeros((n,) + src.shape[1:], dtype=src.dtype)
    return out.index_add_(0, seg, src)
def _pad(x, pw):
    flat = tuple(v for pair in reversed(pw) for v in pair)
    return torch.nn.functional.pad(x, flat)

kernel_name = 'standalone__gqa_softmax__near_ridge'

def setup_inputs():

    _w = (lambda a: (lambda t: t.to(torch.bfloat16) if t.is_floating_point() else t)(torch.as_tensor(a)))
    B, Hq, Hkv, Sq, Sk, D = 8, 16, 8, 256, 512, 256
    return {
        "q": _w((lambda *s: torch.randn(*s, dtype=torch.bfloat16) * 0.8)(B, Hq, Sq, D)),
        "k": _w((lambda *s: torch.randn(*s, dtype=torch.bfloat16) * 0.8)(B, Hkv, Sk, D)),
        "v": _w((lambda *s: torch.randn(*s, dtype=torch.bfloat16) * 0.05)(B, Hkv, Sk, D)),
    }

def reference(q, k, v):
    B, Hq, Sq, D = q.shape
    Hkv = k.shape[1]
    rep = Hq // Hkv
    k = (lambda x, n, axis: torch.repeat_interleave(x, n, dim=axis))(k, rep, axis=1)
    v = (lambda x, n, axis: torch.repeat_interleave(x, n, dim=axis))(v, rep, axis=1)
    scale = D ** -0.5
    scores = torch.einsum("bhqd,bhkd->bhqk", q, k) * scale
    p = _softmax(scores, axis=-1)
    return torch.einsum("bhqk,bhkd->bhqd", p, v)
```

```python
import sys
NAME = 'standalone__gqa_softmax__near_ridge'
def wrap(c, nw, nv):
    out = '; @launch grid=(256,1,1) block=(%d,1,1) lds=131072\n' % (64 * nw)
    out += '.amdgcn_target "amdgcn-amd-amdhsa--gfx950"\n.text\n.globl %s_kernel\n.p2align 8\n.type %s_kernel,@function\n%s_kernel:\n' % (NAME, NAME, NAME)
    out += '\n'.join(c) + '\n'
    out += '.section .rodata,"a"\n.p2align 6\n.amdhsa_kernel %s_kernel\n  .amdhsa_next_free_vgpr %d\n  .amdhsa_next_free_sgpr 96\n  .amdhsa_accum_offset %d\n  .amdhsa_group_segment_fixed_size 0\n  .amdhsa_kernarg_size 48\n  .amdhsa_user_sgpr_count 2\n  .amdhsa_user_sgpr_kernarg_segment_ptr 1\n  .amdhsa_system_sgpr_workgroup_id_x 1\n.end_amdhsa_kernel\n' % (NAME, nv, (nv + 3) // 4 * 4)
    return out
def gen(nw=4, pol='', ntens=3, lds=False, touch=0, shared=False, tpol=''):
    c = []
    E = lambda t: c.append('    ' + t)
    ns = [0]
    def stamp():
        E('s_memtime s[%d:%d]' % (40 + 2 * ns[0], 41 + 2 * ns[0])); ns[0] += 1
    E('s_memrealtime s[70:71]')
    stamp()
    E('s_load_dwordx8 s[4:11], s[0:1], 0')
    E('s_load_dwordx2 s[68:69], s[0:1], 40')
    E('v_lshrrev_b32 v1, 6, v0')
    E('v_and_b32 v0, 63, v0')
    E('v_readfirstlane_b32 s28, v1')
    E('s_and_b32 s36, s2, 7')
    E('s_lshr_b32 s37, s2, 3')
    E('s_lshl_b32 s36, s36, 5')
    E('s_add_u32 s36, s36, s37')
    E('s_lshl_b32 s38, s36, 16')
    E('s_and_b32 s39, s38, 0xfffc0000')
    E('v_lshlrev_b32 v2, 10, v1')
    E('v_lshl_add_u32 v2, v0, 4, v2')
    E('s_lshl_b32 s29, s28, 12')
    E('s_waitcnt lgkmcnt(0)')
    stamp()
    for i, b in enumerate((12, 16, 20)):
        E('s_add_u32 s%d, s%d, s38' % (b, 4 + 2 * i)); E('s_addc_u32 s%d, s%d, 0' % (b + 1, 5 + 2 * i))
        E('s_mov_b32 s%d, 0x10000' % (b + 2)); E('s_mov_b32 s%d, 0x20000' % (b + 3))
    E('s_add_u32 s24, s6, s39'); E('s_addc_u32 s25, s7, 0'); E('s_mov_b32 s26, 0x40000'); E('s_mov_b32 s27, 0x20000')
    n = 0
    NR = 16
    def load(b, so):
        nonlocal n
        E('s_mov_b32 s30, %d' % so)
        if lds:
            E('s_add_u32 m0, s29, %d' % ((n % 4) * 1024))
            E('s_nop 0')
            E('buffer_load_dwordx4 v2, s[%d:%d], s30 offen %s lds' % (b, b + 3, pol))
        else:
            r = 8 + 4 * (n % NR)
            E('buffer_load_dwordx4 v[%d:%d], v2, s[%d:%d], s30 offen %s' % (r, r + 3, b, b + 3, pol))
        n += 1
    if not shared:
        for b in (12, 16, 20)[:ntens]:
            for k in range(64 // nw):
                load(b, k * nw * 1024)
        stamp(); stamp()
    else:
        if touch:
            per = 65536 // (touch * 64 * nw)
            E('v_lshl_add_u32 v3, v1, 6, v0')
            E('v_mul_u32_u24 v3, %d, v3' % touch)
            for k in range(per):
                E('s_mov_b32 s30, %d' % (k * touch * 64 * nw))
                E('buffer_load_dword v4, v3, s[16:19], s30 offen %s' % tpol)
            E('s_waitcnt vmcnt(0)')
            stamp()
            E('s_sleep 60'); E('s_sleep 60')
            E('s_barrier')
        else:
            stamp()
        stamp()
        for k in range(256 // nw):
            load(24, k * nw * 1024)
    stamp()
    E('s_waitcnt vmcnt(0)'); stamp()
    E('s_barrier'); stamp()
    E('s_memrealtime s[72:73]')
    E('s_getreg_b32 s74, hwreg(HW_REG_XCC_ID)')
    E('s_getreg_b32 s75, hwreg(HW_REG_HW_ID)')
    E('s_waitcnt lgkmcnt(0)')
    E('s_cmp_ge_u32 s28, 4'); E('s_cbranch_scc1 L_end')
    E('s_lshl_b32 s36, s2, 2'); E('s_add_u32 s36, s36, s28'); E('s_lshl_b32 s36, s36, 7')
    E('s_add_u32 s76, s68, s36'); E('s_addc_u32 s77, s69, 0'); E('s_mov_b32 s78, 128'); E('s_mov_b32 s79, 0x20000')
    E('v_mov_b32 v0, 0')
    regs = list(range(40, 40 + 2 * ns[0])) + [70, 71, 72, 73, 74, 75]
    for i, r in enumerate(regs):
        E('v_mov_b32 v1, s%d' % r); E('buffer_store_dword v1, v0, s[76:79], 0 offen offset:%d' % (4 * i))
    c.append('L_end:'); E('s_endpgm')
    return wrap(c, nw, 8 + 4 * NR)
if __name__ == "__main__":
  V = dict(
   a=gen(4, 'nt', 3, lds=True), b=gen(8, 'nt', 3, lds=True), c=gen(16, 'nt', 3, lds=True),
   d=gen(4, 'nt', 1, lds=True), e=gen(8, 'nt', 1, lds=True), f=gen(16, 'nt', 1, lds=True),
   g=gen(4, 'nt', shared=True, lds=True), h=gen(4, '', shared=True, lds=True, touch=128, tpol='nt'),
   i=gen(4, '', shared=True, lds=True, touch=64, tpol='nt'), j=gen(4, 'nt', shared=True, lds=True, touch=128, tpol='nt'),
   k=gen(8, 'nt', shared=True, lds=True), l=gen(8, '', shared=True, lds=True, touch=128, tpol=''),
  )
  for k, v in V.items(): open('s_%s.s' % k, 'w').write(v)
```

```python
import sys
from gen_stream import wrap
def gen(shape=32, lds=1, valu=0, reps=1, reuse=1, nseg=12, gap=0, btens=0):
    c = []
    E = lambda t: c.append('    ' + t)
    ns = [0]
    def stamp():
        E('s_memtime s[%d:%d]' % (40 + 4 * ns[0], 41 + 4 * ns[0]))
        E('s_memrealtime s[%d:%d]' % (42 + 4 * ns[0], 43 + 4 * ns[0])); ns[0] += 1
    E('s_load_dwordx8 s[4:11], s[0:1], 0')
    E('s_load_dwordx2 s[96:97], s[0:1], 40')
    E('v_lshrrev_b32 v1, 6, v0')
    E('v_and_b32 v0, 63, v0')
    E('v_readfirstlane_b32 s28, v1')
    E('s_lshl_b32 s38, s2, 16')
    E('v_lshlrev_b32 v2, 10, v1')
    E('v_lshl_add_u32 v2, v0, 4, v2')
    E('s_lshl_b32 s29, s28, 10')
    E('s_waitcnt lgkmcnt(0)')
    for i, b in enumerate((12, 16, 20)):
        E('s_add_u32 s%d, s%d, s38' % (b, 4 + 2 * i)); E('s_addc_u32 s%d, s%d, 0' % (b + 1, 5 + 2 * i))
        E('s_mov_b32 s%d, 0x10000' % (b + 2)); E('s_mov_b32 s%d, 0x20000' % (b + 3))
    for k in range(16):
        E('s_mov_b32 s30, %d' % (k * 4096))
        E('buffer_load_dwordx4 v[%d:%d], v2, s[12:15], s30 offen' % (64 + 4 * k, 67 + 4 * k))
    for k in range(8):
        E('s_mov_b32 s30, %d' % (k * 4096))
        E('buffer_load_dwordx4 v[%d:%d], v2, s[16:19], s30 offen' % (128 + 4 * k, 131 + 4 * k))
    for k in range(16):
        E('s_mov_b32 s30, %d' % (k * 4096))
        E('s_add_u32 m0, s29, %d' % (k * 4096))
        E('s_nop 0')
        E('buffer_load_dwordx4 v2, s[16:19], s30 offen lds')
    E('v_lshlrev_b32 v3, 4, v0')
    for i in range(160, 192): E('v_mov_b32 v%d, 0.5' % i)
    E('s_mov_b32 s31, 0x3db8aa3b')
    E('v_mov_b32 v4, -1.0')
    E('s_waitcnt vmcnt(0)')
    E('s_barrier')
    stamp()
    for sg in range(nseg):
        E('s_mov_b32 s33, %d' % reps)
        c.append('L_%d:' % sg)
        n = 64 if shape == 32 else 128
        rd = 0
        for g in range(n):
            if shape == 32:
                fa = 128 + 4 * ((g // reuse) % 8)
                d = 8 + 16 * ((g // 16) % 2 if reuse == 1 else g % 2)
                t = g % 16
                cc = '0' if (t < reuse) else 'v[%d:%d]' % (d, d + 15)
                if lds and g % (2 * reuse) == 0: E('s_waitcnt lgkmcnt(4)')
                E('v_mfma_f32_32x32x16_bf16 v[%d:%d], v[%d:%d], v[%d:%d], %s' % (d, d + 15, fa, fa + 3, 64 + 4 * t, 67 + 4 * t, cc))
                if lds and g % reuse == 0:
                    fb = 128 + 4 * ((g // reuse + 6) % 8)
                    E('ds_read_b128 v[%d:%d], v3 offset:%d' % (fb, fb + 3, (rd % 64) * 1024)); rd += 1
                dov = True
            else:
                r2 = 2 * reuse
                fa = 128 + 4 * ((g // r2) % 8)
                d = 8 + 4 * (g % r2) + 16 * ((g // 32) % 2)
                t = g % 16
                cc = '0' if (g % 32) < r2 else 'v[%d:%d]' % (d, d + 3)
                if lds and g % (2 * r2) == 0: E('s_waitcnt lgkmcnt(4)')
                E('v_mfma_f32_16x16x32_bf16 v[%d:%d], v[%d:%d], v[%d:%d], %s' % (d, d + 3, fa, fa + 3, 64 + 4 * t, 67 + 4 * t, cc))
                if lds and g % r2 == 0:
                    fb = 128 + 4 * ((g // r2 + 6) % 8)
                    E('ds_read_b128 v[%d:%d], v3 offset:%d' % (fb, fb + 3, (rd % 64) * 1024)); rd += 1
                dov = (g % 2 == 1)
            if valu and dov:
                x = 160 + (g % 16); y = 176 + (g % 16); q = 64 + (g * 7) % 64
                E('v_fma_f32 v%d, v%d, s31, v4' % (x, q))
                E('v_exp_f32 v%d, v%d' % (y, 160 + ((g + 15) % 16)))
                if g % 2 == 0 or shape == 16: E('v_cvt_pk_bf16_f32 v%d, v%d, v%d' % (192 + g % 8, 176 + (g + 4) % 16, 176 + (g + 5) % 16))
                else: E('v_max3_f32 v5, v5, v%d, v%d' % (160 + (g + 3) % 16, 160 + (g + 4) % 16))
            if gap and dov: E('s_nop %d' % (gap - 1))
        E('s_sub_u32 s33, s33, 1')
        E('s_cmp_lg_u32 s33, 0')
        E('s_cbranch_scc1 L_%d' % sg)
        stamp()
    E('s_waitcnt lgkmcnt(0)')
    E('s_lshl_b32 s36, s2, 2'); E('s_add_u32 s36, s36, s28'); E('s_lshl_b32 s36, s36, 7')
    E('s_add_u32 s12, s96, s36'); E('s_addc_u32 s13, s97, 0'); E('s_mov_b32 s14, 128'); E('s_mov_b32 s15, 0x20000')
    E('v_mov_b32 v0, 0')
    regs = list(range(40, 40 + 4 * ns[0], 2))
    for i, r in enumerate(regs):
        E('v_mov_b32 v1, s%d' % r); E('buffer_store_dword v1, v0, s[12:15], 0 offen offset:%d' % (4 * i))
    E('s_endpgm')
    return wrap(c, 4, 256).replace('next_free_sgpr 96', 'next_free_sgpr 100')
if __name__ == '__main__':
    V = dict(a=gen(32, 0, 0, reps=2), b=gen(32, 1, 0, reps=2), c=gen(32, 1, 1, reps=2), d=gen(16, 0, 0, reps=2), e=gen(16, 1, 0, reps=2), f=gen(16, 1, 1, reps=2),
             g=gen(32, 1, 0, reps=2, reuse=2), h=gen(32, 1, 1, reps=2, reuse=2), i=gen(32, 0, 1, reps=2), j=gen(32, 1, 1, reps=16), k=gen(16, 1, 1, reps=16))
    for k, v in V.items(): open('p_%s.s' % k, 'w').write(v)
```

```python
from gen_stream import wrap
def gen(place=(2, 2, 0, 0), ng=3, fill=(0, 0, 2, 1), side=0, b128=0, nseg=12, reps=2, slp=6, store='', pol='sc0 sc1', bar=0, per=8, width=4):
    c = []
    E = lambda t: c.append('    ' + t)
    ns = [0]
    def stamp():
        E('s_memtime s[%d:%d]' % (40 + 4 * ns[0], 41 + 4 * ns[0]))
        E('s_memrealtime s[%d:%d]' % (42 + 4 * ns[0], 43 + 4 * ns[0])); ns[0] += 1
    E('s_load_dwordx8 s[4:11], s[0:1], 0')
    E('s_load_dwordx2 s[96:97], s[0:1], 40')
    E('v_lshrrev_b32 v1, 6, v0'); E('v_and_b32 v0, 63, v0'); E('v_readfirstlane_b32 s28, v1')
    E('s_lshl_b32 s38, s2, 16')
    if side:
        E('s_cmp_ge_u32 s28, 4'); E('s_cbranch_scc1 L_side')
    E('v_lshlrev_b32 v2, 10, v1'); E('v_lshl_add_u32 v2, v0, 4, v2'); E('s_lshl_b32 s29, s28, 10')
    E('s_waitcnt lgkmcnt(0)')
    for i, b in enumerate((12, 16, 20)):
        E('s_add_u32 s%d, s%d, s38' % (b, 4 + 2 * i)); E('s_addc_u32 s%d, s%d, 0' % (b + 1, 5 + 2 * i))
        E('s_mov_b32 s%d, 0x10000' % (b + 2)); E('s_mov_b32 s%d, 0x20000' % (b + 3))
    for k in range(16):
        E('s_mov_b32 s30, %d' % (k * 4096))
        E('buffer_load_dwordx4 v[%d:%d], v2, s[12:15], s30 offen' % (128 + 4 * k, 131 + 4 * k))
        E('s_add_u32 m0, s29, %d' % (k * 4096)); E('s_nop 0')
        E('buffer_load_dwordx4 v2, s[20:23], s30 offen lds')
    E('v_lshrrev_b32 v8, 2, v0'); E('v_lshlrev_b32 v4, 7, v8'); E('v_bfe_u32 v8, v0, 3, 2'); E('v_lshl_add_u32 v4, v8, 5, v4')
    E('v_and_b32 v8, 3, v0'); E('v_lshl_add_u32 v4, v8, 3, v4')
    for db in range(1, 4): E('v_xor_b32 v%d, %d, v4' % (4 + db, 32 * db))
    E('v_lshlrev_b32 v3, 4, v0')
    for i in range(200, 232): E('v_mov_b32 v%d, 1.0' % i)
    E('s_add_u32 s24, s10, s38'); E('s_addc_u32 s25, s11, 0'); E('s_mov_b32 s26, 0x10000'); E('s_mov_b32 s27, 0x20000')
    if store == 'str':
        E('v_and_b32 v9, 15, v0'); E('v_lshrrev_b32 v10, 4, v0')
    else:
        E('v_lshrrev_b32 v9, 2, v0'); E('v_and_b32 v10, 3, v0')
    E('v_lshl_add_u32 v9, v1, 5, v9'); E('v_lshlrev_b32 v9, 9, v9'); E('v_lshl_add_u32 v9, v10, 4, v9')
    E('s_waitcnt vmcnt(0)'); E('s_barrier')
    stamp()
    NGRP = 24
    for sg in range(nseg):
        E('s_mov_b32 s33, %d' % reps)
        c.append('L_%d:' % sg)
        fi = 0
        for gi in range(NGRP):
            nr = 2 if b128 else 4
            E('s_waitcnt lgkmcnt(%d)' % (nr * (ng - 2)))
            db = (gi >> 1) & 3; xp = gi & 1
            rd = 0
            for i in range(4):
                qh = (i >> 1) ^ xp; e = i & 1
                a = 16 + 8 * (gi % ng) + 4 * e; d = 64 + 8 * db + 4 * qh; bb = 128 + 8 * ((2 * xp + e + 4 * (gi // 8)) % 8) + 4 * qh
                E('v_mfma_f32_16x16x32_bf16 v[%d:%d], v[%d:%d], v[%d:%d], v[%d:%d]' % (d, d + 3, a, a + 3, bb, bb + 3, d, d + 3))
                g2 = gi + ng - 1; a2 = 16 + 8 * (g2 % ng)
                for k in range(place[i]):
                    if b128:
                        E('ds_read_b128 v[%d:%d], v3 offset:%d' % (a2 + 4 * rd, a2 + 4 * rd + 3, ((2 * g2 + rd) % 48) * 1024))
                    else:
                        E('ds_read_b64_tr_b16 v[%d:%d], v%d offset:%d' % (a2 + 2 * rd, a2 + 2 * rd + 1, 4 + ((g2 >> 1) & 3), (g2 // 8 % 3) * 16384 + (g2 & 1) * 8192 + rd * 2048))
                    rd += 1
                if store and gi % per == 2 and i == 1:
                    if width == 4: E('buffer_store_dwordx4 v[200:203], v9, s[24:27], 0 offen offset:%d %s' % (64 * ((gi // per + 3 * sg) % 8), pol))
                    else: E('buffer_store_dwordx2 v[200:201], v9, s[24:27], 0 offen offset:%d %s' % (64 * ((gi // per + 3 * sg) % 8), pol))
                    continue
                if bar and gi % 8 == 5 and i == 2: E('s_barrier')
                for k in range(fill[i]):
                    E('v_mul_f32 v%d, v%d, v%d' % (204 + fi % 12, 204 + fi % 12, 216 + fi % 16)); fi += 1
        E('s_sub_u32 s33, s33, 1'); E('s_cmp_lg_u32 s33, 0'); E('s_cbranch_scc1 L_%d' % sg)
        stamp()
    E('s_waitcnt lgkmcnt(0)')
    E('s_lshl_b32 s36, s2, 2'); E('s_add_u32 s36, s36, s28'); E('s_lshl_b32 s36, s36, 7')
    E('s_add_u32 s12, s96, s36'); E('s_addc_u32 s13, s97, 0'); E('s_mov_b32 s14, 128'); E('s_mov_b32 s15, 0x20000')
    E('v_mov_b32 v0, 0')
    for i, r in enumerate(range(40, 40 + 4 * ns[0], 2)):
        E('v_mov_b32 v1, s%d' % r); E('buffer_store_dword v1, v0, s[12:15], 0 offen offset:%d' % (4 * i))
    E('s_endpgm')
    if side:
        c.append('L_side:')
        E('s_barrier')
        E('s_mov_b32 s35, 75')
        E('s_waitcnt lgkmcnt(0)')
        E('s_and_b32 s38, s2, 7'); E('s_lshl_b32 s38, s38, 3'); E('s_lshr_b32 s39, s2, 5'); E('s_add_u32 s38, s38, s39'); E('s_lshl_b32 s38, s38, 18')
        E('s_add_u32 s16, s6, s38'); E('s_addc_u32 s17, s7, 0'); E('s_mov_b32 s18, 0x40000'); E('s_mov_b32 s19, 0x20000')
        E('v_lshlrev_b32 v2, 4, v0'); E('s_and_b32 s29, s28, 3'); E('s_lshl_b32 s29, s29, 12'); E('s_mov_b32 s30, s29'); E('s_add_u32 s29, s29, 0x14000')
        c.append('L_poll:')
        E('s_mov_b32 m0, s29'); E('s_nop 0')
        for n in range(4): E('buffer_load_dwordx4 v2, s[16:19], s30 offen offset:%d lds' % (n * 1024))
        E('s_add_u32 s30, s30, 0x4000'); E('s_and_b32 s30, s30, 0x3ffff'); E('s_sleep %d' % slp)
        E('s_sub_u32 s35, s35, 1'); E('s_cbranch_scc0 L_poll'); E('s_endpgm')
    return wrap(c, 8 if side else 4, 256).replace('next_free_sgpr 96', 'next_free_sgpr 100')
P = dict(place=(1, 1, 1, 1), fill=(1, 1, 1, 0), ng=4)
V = dict(a=gen(**P), b=gen(bar=1, **P), c=gen(store='str', bar=1, **P), d=gen(store='str', bar=0, **P), e=gen(store='lin', bar=1, **P), f=gen(store='str', bar=1, pol='', **P),
         g=gen(store='lin', bar=0, **P), h=gen(store='str', bar=0, per=4, **P), i=gen(store='str', bar=1, width=2, **P))
for k, v in V.items(): open('q_%s.s' % k, 'w').write(v)
```

```python
from gen_stream import wrap
def gen(kbrot=0, infl=3, nw=8, pol='nt', order='q', pol0=None, desync=0):
    c = []
    E = lambda t: c.append('    ' + t)
    ns = [0]
    def stamp():
        E('s_memtime s[%d:%d]' % (40 + 4 * ns[0], 41 + 4 * ns[0]))
        E('s_memrealtime s[%d:%d]' % (42 + 4 * ns[0], 43 + 4 * ns[0])); ns[0] += 1
    stamp()
    E('s_load_dwordx8 s[4:11], s[0:1], 0')
    E('s_load_dwordx2 s[96:97], s[0:1], 40')
    E('v_lshrrev_b32 v1, 6, v0'); E('v_and_b32 v0, 63, v0'); E('v_readfirstlane_b32 s28, v1')
    E('s_and_b32 s36, s2, 7'); E('s_lshr_b32 s37, s2, 3'); E('s_lshl_b32 s36, s36, 5'); E('s_add_u32 s36, s36, s37')
    E('s_lshl_b32 s38, s36, 16'); E('s_and_b32 s39, s38, 0xfffc0000')
    E('s_lshr_b32 s33, s36, 2'); E('s_and_b32 s33, s33, 3'); E('s_lshl_b32 s33, s33, 7')
    E('s_and_b32 s34, s38, 0x30000' if kbrot else 's_mov_b32 s34, 0')
    per = 16 // nw
    E('v_lshrrev_b32 v3, 3, v0'); E('v_mul_u32_u24 v5, %d, v1' % (8 * per)); E('v_add_u32 v3, v3, v5'); E('v_and_b32 v4, 7, v0'); E('v_lshlrev_b32 v4, 4, v4'); E('v_lshl_add_u32 v2, v3, 9, v4')
    E('s_mul_i32 s29, s28, %d' % (1024 * per))
    E('s_waitcnt lgkmcnt(0)')
    E('s_add_u32 s12, s4, s38'); E('s_addc_u32 s13, s5, 0'); E('s_mov_b32 s14, 0x10000'); E('s_mov_b32 s15, 0x20000')
    E('s_add_u32 s16, s6, s39'); E('s_addc_u32 s17, s7, 0'); E('s_mov_b32 s18, 0x40000'); E('s_mov_b32 s19, 0x20000')
    E('s_add_u32 s20, s8, s39'); E('s_addc_u32 s21, s9, 0'); E('s_mov_b32 s22, 0x40000'); E('s_mov_b32 s23, 0x20000')
    seq = []
    for cc in range(4):
        if order == 'q' or cc == 0: seq.append((12, cc, None))
        for kb in range(4):
            seq.append((16, cc, kb))
            if order == 'mid' and kb == 1 and cc < 3: seq.append((12, cc + 1, None))
    for cc in range(4):
        for kb in range(4): seq.append((20, cc, kb))
    if order.startswith('lead'):
        per_ = [(16, cc) for cc in range(4)] + [(20, cc) for cc in range(4)]
        seq = [(12, cc, None) for cc in range(4)]
        if order == 'lead1':
            seq.append(per_[0] + (0,))
            for p in range(8):
                if p + 1 < 8: seq.append(per_[p + 1] + (0,))
                for kb in (1, 2, 3): seq.append(per_[p] + (kb,))
        elif order == 'lead2':
            seq += [per_[0] + (0,), per_[1] + (0,)]
            for p in range(0, 8, 2):
                if p + 2 < 8: seq += [per_[p + 2] + (0,), per_[p + 3] + (0,)]
                for pp in (p, p + 1):
                    for kb in (1, 2, 3): seq.append(per_[pp] + (kb,))
        elif order == 'lead0':
            for p in range(8):
                for kb in range(4): seq.append(per_[p] + (kb,))
    def body(seq):
        def slot(i):
            b, cc, kb = seq[i]
            for n in range(per):
                E('s_xor_b32 s30, s33, %d' % (cc * 128))
                if kb is not None:
                    E('s_xor_b32 s31, s34, %d' % (kb * 65536)); E('s_add_u32 s30, s30, s31')
                E('s_add_u32 s30, s30, %d' % (n * 4096))
                E('s_add_u32 m0, s29, %d' % ((i % 8) * 16384 + n * 1024)); E('s_nop 0')
                E('buffer_load_dwordx4 v2, s[%d:%d], s30 offen %s lds' % (b, b + 3, 'nt' if kb is None else pol))
        for i in range(infl): slot(i)
        for i in range(len(seq)):
            rem = min(len(seq), i + infl) - (i + 1)
            E('s_waitcnt vmcnt(%d)' % (rem * per)); E('s_barrier')
            if i in (3, 7, 11, 15, 19, 23, 27, 31, 35): stamp()
            if i + infl < len(seq): slot(i + infl)
    if desync:
        per_ = [(16, cc) for cc in range(4)] + [(20, cc) for cc in range(4)]
        def shifted(pos):
            sq = [per_[p] + (kb,) for p in range(8) for kb in range(4)]
            for p in range(1, 8):
                x = sq.pop(4 * p); sq.insert(4 * p - pos, x)
            return [(12, cc, None) for cc in range(4)] + sq
        n0 = ns[0]
        E('s_lshr_b32 s35, s36, 2'); E('s_and_b32 s35, s35, %d' % (desync - 1))
        for k in range(1, desync):
            E('s_cmp_eq_u32 s35, %d' % k); E('s_cbranch_scc1 L_v%d' % k)
        for k in range(desync):
            c.append('L_v%d:' % k); ns[0] = n0
            body(shifted(k * 4 // desync))
            E('s_branch L_join')
        c.append('L_join:')
    else:
        body(seq)
    while ns[0] < 13: stamp()
    E('s_waitcnt lgkmcnt(0)')
    E('s_cmp_ge_u32 s28, 4'); E('s_cbranch_scc1 L_end')
    E('s_lshl_b32 s36, s2, 2'); E('s_add_u32 s36, s36, s28'); E('s_lshl_b32 s36, s36, 7')
    E('s_add_u32 s12, s96, s36'); E('s_addc_u32 s13, s97, 0'); E('s_mov_b32 s14, 128'); E('s_mov_b32 s15, 0x20000')
    E('v_mov_b32 v0, 0')
    for i, r in enumerate(range(40, 40 + 4 * ns[0], 2)):
        E('v_mov_b32 v1, s%d' % r); E('buffer_store_dword v1, v0, s[12:15], 0 offen offset:%d' % (4 * i))
    c.append('L_end:')
    E('s_endpgm')
    return wrap(c, nw, 64).replace('next_free_sgpr 96', 'next_free_sgpr 100')
import sys
V = dict(a=gen(1, 4, order='lead0', pol=''), b=gen(1, 4, pol='', desync=2), c=gen(1, 4, pol='', desync=4), d=gen(1, 3, pol='', desync=4), e=gen(1, 6, pol='', desync=4))
for k, v in V.items(): open('s_%s.s' % k, 'w').write(v)
```
